```python
import torch

def _softmax(x, axis=-1):
    return torch.softmax(x, dim=axis)
def _gelu(x):
    return torch.nn.functional.gelu(x, approximate="tanh")
def _silu(x):
    return torch.nn.functional.silu(x)
def _sigmoid(x):
    return torch.sigmoid(x)
def _layernorm(x, axis=-1, eps=1e-5):
    m = x.mean(dim=axis, keepdim=True)
    v = x.var(dim=axis, keepdim=True, unbiased=False)
    return (x - m) / torch.sqrt(v + eps)
def _scatter_add(tgt, idx, src, axis=0):
    return tgt.clone().index_add_(axis, idx, src)
def _segment_sum(src, seg, n):
    out = torch.zeros((n,) + src.shape[1:], dtype=src.dtype)
    return out.index_add_(0, seg, src)
def _pad(x, pw):
    flat = tuple(v for pair in reversed(pw) for v in pair)
    return torch.nn.functional.pad(x, flat)

kernel_name = 'parallel_sum__sliding_block_cached__dense_activation_relu__decode'

def setup_inputs():

    _w = (lambda a: (lambda t: t.to(torch.bfloat16) if t.is_floating_point() else t)(torch.as_tensor(a)))
    def _A_setup():
        B, Sq, D = 1, 1, 640
        Hq, Hkv, Sk, Dh = 32, 32, 32768, 192
        assert Hq % Hkv == 0, (Hq, Hkv)
        return {
            "x": _w((lambda *s: torch.randn(*s, dtype=torch.bfloat16) * 0.05)(B, Sq, D)),
            "k_cache": _w((lambda *s: torch.randn(*s, dtype=torch.bfloat16) * 3.2)(B, Hkv, Sk, Dh)),
            "v_cache": _w((lambda *s: torch.randn(*s, dtype=torch.bfloat16) * 1.6)(B, Hkv, Sk, Dh)),
            "wq": _w((lambda *s: torch.randn(*s, dtype=torch.bfloat16) * 3.2)(D, Hq * Dh) * (D ** -0.5)),
            "wo": _w((lambda *s: torch.randn(*s, dtype=torch.bfloat16) * 1.6)(Hq * Dh, D) * ((Hq * Dh) ** -0.5)),
        }
    _A_in = _A_setup()

    def _B_setup():
        B, S, D, Dff = 1, 1, 640, 1536
        return {
            "x": _w((lambda *s: torch.randn(*s, dtype=torch.bfloat16) * 0.05)(B, S, D)),
            "w1": _w((lambda *s: torch.randn(*s, dtype=torch.bfloat16) * 0.05)(D, Dff)),
            "w2": _w((lambda *s: torch.randn(*s, dtype=torch.bfloat16) * 0.05)(Dff, D)),
        }
    _B_in = _B_setup()

    return {
        "A_x": _A_in["x"],
        "A_k_cache": _A_in["k_cache"],
        "A_v_cache": _A_in["v_cache"],
        "A_wq": _A_in["wq"],
        "A_wo": _A_in["wo"],
        "B_x": _B_in["x"],
        "B_w1": _B_in["w1"],
        "B_w2": _B_in["w2"],
    }

def reference(A_x, A_k_cache, A_v_cache, A_wq, A_wo, B_x, B_w1, B_w2):
    def _A_ref(x, k_cache, v_cache, wq, wo):
        B, Sq, D = x.shape
        Hq, Dh = 32, 192
        Hkv, Sk = k_cache.shape[1], k_cache.shape[2]
        W = min(4096, max(256, Sk // 4))
        rep = Hq // Hkv
        q = (lambda x, *d: x.permute(*d))((x @ wq).reshape(B, Sq, Hq, Dh), 0, 2, 1, 3)
        k = (lambda x, n, axis: torch.repeat_interleave(x, n, dim=axis))(k_cache[:, :, Sk - W:, :], rep, axis=1)
        v = (lambda x, n, axis: torch.repeat_interleave(x, n, dim=axis))(v_cache[:, :, Sk - W:, :], rep, axis=1)
        scores = torch.einsum("bhqd,bhkd->bhqk", q, k) * (Dh ** -0.5)
        p = _softmax(scores, axis=-1)
        o = torch.einsum("bhqk,bhkd->bhqd", p, v)
        return (lambda x, *d: x.permute(*d))(o, 0, 2, 1, 3).reshape(B, Sq, Hq * Dh) @ wo

    def _B_ref(x, w1, w2):
        h = torch.einsum("bsd,df->bsf", x, w1)
        zero = torch.zeros_like(h)
        h = torch.maximum(h, zero)
        return torch.einsum("bsf,fd->bsd", h, w2)

    x = A_x
    xn = _layernorm(x, axis=-1)
    return x + _A_ref(xn, A_k_cache, A_v_cache, A_wq, A_wo) + _B_ref(xn, B_w1, B_w2)
```

```python
import re

TRANS = ('v_exp_f32', 'v_log_f32', 'v_rcp_f32', 'v_rsq_f32', 'v_sqrt_f32', 'v_sin_f32', 'v_cos_f32')


def regs_of(tok):
    tok = tok.strip()
    tok = tok.lstrip('-')
    m = re.match(r'^abs\((.*)\)$', tok)
    if m:
        tok = m.group(1)
    m = re.match(r'^([vs])(\d+)$', tok)
    if m:
        return [m.group(1) + m.group(2)]
    m = re.match(r'^([vs])\[(\d+):(\d+)\]$', tok)
    if m:
        return [m.group(1) + str(i) for i in range(int(m.group(2)), int(m.group(3)) + 1)]
    if tok in ('vcc', 'exec'):
        return [tok]
    return []


class Asm:
    def __init__(self):
        self.lines = []
        self.hist = []
        self.vm = []

    def raw(self, text):
        self.lines.append(text)

    def comment(self, text):
        self.lines.append('    ; ' + text)

    def label(self, name):
        self.lines.append(name + ':')
        self.nop(5)

    def nop(self, n):
        while n > 0:
            k = min(n, 16)
            self.lines.append('    s_nop %d' % (k - 1))
            for _ in range(k):
                self.hist.append(dict(kind='nop', op='s_nop', w=set()))
            n -= k
        self.hist = self.hist[-12:]

    def _need(self, req, pred):
        need = 0
        n = len(self.hist)
        for idx, h in enumerate(self.hist):
            dist = n - 1 - idx
            if dist < req and pred(h):
                need = max(need, req - dist)
        return need

    def __call__(self, text):
        text = text.strip()
        op, _, rest = text.partition(' ')
        parts = [p.strip() for p in rest.split(',')] if rest else []
        ops = []
        mods = ''
        for i, p in enumerate(parts):
            ops.append(p)
        joined = rest
        m = re.search(r'\s(quad_perm|row_|offen|offset|sc0|sc1|nt|op_sel|lds|off\b|bank_mask)', ' ' + joined)
        if m:
            mods = (' ' + joined)[m.start():]
            joined = (' ' + joined)[:m.start()]
        ops = [p.strip() for p in joined.split(',') if p.strip()]
        is_valu = op.startswith('v_')
        is_vmem = op.startswith('buffer_') or op.startswith('global_')
        is_ds = op.startswith('ds_')
        is_dpp = 'dpp' in op or 'quad_perm' in mods or 'row_' in mods
        is_perml = op.startswith('v_permlane')
        is_rdl = op.startswith('v_readlane') or op.startswith('v_readfirstlane')
        is_dot = op.startswith('v_dot')
        is_trans = op.replace('_e32', '').replace('_e64', '') in TRANS
        w = set()
        r = set()
        if is_valu:
            if is_perml:
                for o in ops[:2]:
                    w.update(regs_of(o)); r.update(regs_of(o))
            else:
                w.update(regs_of(ops[0]))
                start = 1
                if op.startswith('v_add_co') or op.startswith('v_addc_co') or op.startswith('v_sub_co'):
                    w.update(regs_of(ops[1])); start = 2
                for o in ops[start:]:
                    r.update(regs_of(o))
                if op.startswith('v_fmac') or op.startswith('v_dot2c'):
                    r.update(regs_of(ops[0]))
        elif is_vmem:
            if 'load' in op:
                for o in ops[1:]:
                    r.update(regs_of(o))
            else:
                for o in ops:
                    r.update(regs_of(o))
        elif is_ds:
            if 'read' in op or 'permute' in op or 'swizzle' in op:
                for o in ops[1:]:
                    r.update(regs_of(o))
            else:
                for o in ops:
                    r.update(regs_of(o))
        need = 0
        rv = {x for x in r if x.startswith('v') and x != 'vcc'}
        rs = {x for x in r if x.startswith('s') or x == 'vcc'}
        wv = {x for x in w if x.startswith('v') and x != 'vcc'}
        if is_valu:
            if is_dpp or is_perml:
                need = max(need, self._need(2, lambda h: h['kind'] == 'valu' and h['w'] & rv))
            if is_rdl:
                need = max(need, self._need(1, lambda h: h['kind'] == 'valu' and h['w'] & rv))
            if not is_trans:
                need = max(need, self._need(1, lambda h: h['kind'] == 'valu' and h['trans'] and h['w'] & rv))
            if is_dot:
                srcab = set()
                for o in ops[1:3]:
                    srcab.update(regs_of(o))
                need = max(need, self._need(3, lambda h: h['kind'] == 'valu' and h['dot'] and (h['w'] & srcab or (h['op'] != op and h['w'] & (rv | wv)))))
            else:
                need = max(need, self._need(3, lambda h: h['kind'] == 'valu' and h['dot'] and h['w'] & (rv | wv)))
            need = max(need, self._need(2, lambda h: h['kind'] == 'valu' and h['w'] & rs))
            need = max(need, self._need(2, lambda h: h['kind'] == 'wstore' and h['r'] & wv))
        if is_vmem:
            need = max(need, self._need(5, lambda h: h['kind'] == 'valu' and h['w'] & rs))
            need = max(need, self._need(3, lambda h: h['kind'] == 'valu' and h['dot'] and h['w'] & rv))
        if is_ds:
            need = max(need, self._need(3, lambda h: h['kind'] == 'valu' and h['dot'] and h['w'] & rv))
        if need:
            self.nop(need)
        self.lines.append('    ' + text)
        if is_valu:
            self.hist.append(dict(kind='valu', op=op, w=w, trans=is_trans, dot=is_dot))
        elif is_vmem and 'store' in op and ('x3' in op or 'x4' in op):
            self.hist.append(dict(kind='wstore', op=op, w=set(), r=set(regs_of(ops[0]))))
        else:
            self.hist.append(dict(kind='other', op=op, w=set()))
        self.hist = self.hist[-12:]

    def vmem(self, text, name):
        self(text)
        self.vm.append(name)

    def wait_vm(self, name):
        idx = max(i for i, n in enumerate(self.vm) if n == name)
        n_after = len(self.vm) - 1 - idx
        assert n_after <= 63
        self('s_waitcnt vmcnt(%d)' % n_after)
        self.vm = self.vm[idx + 1:]

    def wait_vm_all(self):
        self('s_waitcnt vmcnt(0)')
        self.vm = []

    def text(self):
        return '\n'.join(self.lines) + '\n'
```

```python
import struct
import sys
sys.path.insert(0, 'gen')
from asmlib import Asm

NAME = 'parallel_sum__sliding_block_cached__dense_activation_relu__decode'


def f32(x):
    return '0x%08x' % struct.unpack('<I', struct.pack('<f', x))[0]


H_OFF = 4096
P_OFF = 65536
Y_OFF = 1048576
WS_BYTES = 1610612736
OOB = 0x70000000
XN = 0
QP = 2560
HP = QP + 16 * 192 * 4
QL = HP + 512
MX = QL + 384
LS = MX + 64
OL = LS + 64
LDS_BYTES = OL + 384 * 4

DPPM = ' row_mask:0xf bank_mask:0xf'
SPIN = 20000

sX, sK, sV, sWq, sWo, sW1, sW2, sOut, sWs = 28, 32, 36, 40, 44, 48, 52, 56, 60
sW, sXcd, sSlot, sHead, sSplit, sI, sJ, sC0 = 64, 65, 66, 67, 68, 69, 70, 71
sT, sNT = 26, 27
sThird, sCg = 72, 73


def srd(n):
    return 's[%d:%d]' % (n, n + 3)


def build(nt_kv=True, ldmod='sc1', stmod='sc1'):
    a = Asm()
    KVM = ' nt' if nt_kv else ''

    def mk_srd(dst, ptr, size):
        a('s_mov_b32 s%d, s%d' % (dst, ptr))
        a('s_and_b32 s%d, s%d, 0xffff' % (dst + 1, ptr + 1))
        a('s_mov_b32 s%d, %d' % (dst + 2, size))
        a('s_mov_b32 s%d, 0x20000' % (dst + 3))

    def red_dpp(regs, op, steps):
        for st in steps:
            for r in regs:
                a('v_%s_f32_dpp v%d, v%d, v%d %s%s' % (op, r, r, r, st, DPPM))

    Q1, Q2, HM, RM = 'quad_perm:[1,0,3,2]', 'quad_perm:[2,3,0,1]', 'row_half_mirror', 'row_mirror'

    def red_swap(regs, tmps, op, which):
        for r, t in zip(regs, tmps):
            a('v_mov_b32 v%d, v%d' % (t, r))
        for r, t in zip(regs, tmps):
            a('v_permlane%d_swap_b32 v%d, v%d' % (which, r, t))
        for r, t in zip(regs, tmps):
            a('v_%s_f32 v%d, v%d, v%d' % (op, r, r, t))

    def allred64(regs, tmps, op='add'):
        red_dpp(regs, op, [Q1, Q2, HM, RM])
        red_swap(regs, tmps, op, 16)
        red_swap(regs, tmps, op, 32)

    def round_bf16_pair(r0, r1, t):
        a('v_cvt_pk_bf16_f32 v%d, v%d, v%d' % (t, r0, r1))
        a('v_lshlrev_b32 v%d, 16, v%d' % (r0, t))
        a('v_and_b32 v%d, 0xffff0000, v%d' % (r1, t))

    def macn(acc, mult, w, n, t1, t2, first=False, astride=1):
        for d in range(n):
            a('v_lshlrev_b32 v%d, 16, v%d' % (t1, w + d))
            a('v_and_b32 v%d, 0xffff0000, v%d' % (t2, w + d))
            opn = 'v_mul_f32' if first else 'v_fmac_f32'
            a('%s v%d, v%d, v%d' % (opn, acc + astride * 2 * d, mult, t1))
            a('%s v%d, v%d, v%d' % (opn, acc + astride * (2 * d + 1), mult, t2))

    ACC = 6

    def acc_reduce_write(vA1, vA2):
        for k in range(6):
            a('v_permlane32_swap_b32 v%d, v%d' % (ACC + 2 * k, ACC + 2 * k + 1))
        for k in range(6):
            a('v_add_f32 v%d, v%d, v%d' % (ACC + 2 * k, ACC + 2 * k, ACC + 2 * k + 1))
        for m in range(3):
            a('v_permlane16_swap_b32 v%d, v%d' % (ACC + 4 * m, ACC + 4 * m + 2))
        for m in range(3):
            a('v_add_f32 v%d, v%d, v%d' % (ACC + 4 * m, ACC + 4 * m, ACC + 4 * m + 2))
        a('v_and_b32 v%d, 1, v3' % vA1)
        a('v_lshlrev_b32 v%d, 1, v%d' % (vA1, vA1))
        a('v_lshrrev_b32 v%d, 1, v3' % vA2)
        a('v_or_b32 v%d, v%d, v%d' % (vA1, vA1, vA2))
        a('s_mul_i32 s74, s%d, 768' % sW)
        a('v_lshlrev_b32 v%d, 2, v%d' % (vA1, vA1))
        a('v_add_u32 v%d, s74, v%d' % (vA1, vA1))
        a('v_lshl_add_u32 v%d, v2, 4, v%d' % (vA2, vA1))
        a('v_lshl_add_u32 v%d, v2, 5, v%d' % (vA1, vA1))
        a('ds_write_b32 v%d, v%d offset:%d' % (vA1, ACC, QP))
        a('ds_write_b32 v%d, v%d offset:%d' % (vA1, ACC + 4, QP + 16))
        a('ds_write_b32 v%d, v%d offset:%d' % (vA2, ACC + 8, QP + 512))

    a('s_cmp_ge_u32 s2, 256')
    a('s_cbranch_scc1 L_end')
    a('s_load_dwordx16 s[4:19], s[0:1], 0')
    a('s_load_dwordx4 s[20:23], s[0:1], 64')
    a('s_load_dwordx2 s[24:25], s[0:1], 80')
    a('v_and_b32 v1, 63, v0')
    a('v_and_b32 v2, 15, v0')
    a('v_bfe_u32 v3, v0, 4, 2')
    a('v_lshrrev_b32 v6, 6, v0')
    a('v_readfirstlane_b32 s%d, v6' % sW)
    a('s_and_b32 s%d, s2, 7' % sXcd)
    a('s_lshr_b32 s%d, s2, 3' % sSlot)
    a('s_lshr_b32 s74, s%d, 3' % sSlot)
    a('s_lshl_b32 s%d, s%d, 2' % (sHead, sXcd))
    a('s_add_u32 s%d, s%d, s74' % (sHead, sHead))
    a('s_and_b32 s%d, s%d, 7' % (sSplit, sSlot))
    a('s_lshr_b32 s74, s%d, 4' % sSlot)
    a('s_lshl_b32 s%d, s%d, 1' % (sI, sXcd))
    a('s_add_u32 s%d, s%d, s74' % (sI, sI))
    a('s_and_b32 s%d, s%d, 15' % (sJ, sSlot))
    a('s_mul_i32 s%d, s%d, 192' % (sC0, sXcd))
    a('s_mul_i32 s74, s%d, 6' % sSlot)
    a('s_add_u32 s%d, s%d, s74' % (sC0, sC0))
    a('s_mul_i32 s74, s%d, 13' % sW)
    a('s_lshr_b32 s%d, s74, 6' % sThird)
    a('s_mul_i32 s74, s%d, 5' % sThird)
    a('s_sub_u32 s%d, s%d, s74' % (sCg, sW))
    a('v_lshlrev_b32 v6, 4, v2')
    a('v_lshlrev_b32 v7, 3, v2')
    a('v_add_u32 v7, 256, v7')
    a('v_mul_u32_u24 v8, 384, v3')
    a('v_add_u32 v4, v6, v8')
    a('v_add_u32 v5, v7, v8')
    a('v_mul_u32_u24 v8, 122880, v3')
    a('v_add_u32 v62, v6, v8')
    a('v_add_u32 v63, v7, v8')
    a('v_mul_u32_u24 v9, 20, v1')
    a('v_mul_u32_u24 v10, 3072, v0')
    a('s_mul_i32 s75, s%d, 12582912' % sHead)
    a('s_mul_i32 s74, s%d, 196608' % sSplit)
    a('s_add_u32 s75, s75, s74')
    a('s_mul_i32 s74, s%d, 12288' % sW)
    a('s_add_u32 s75, s75, s74')
    a('s_add_u32 s75, s75, 11010048')
    a('s_add_u32 s76, s75, 4608')
    a('s_add_u32 s77, s75, 9216')
    a('s_mul_i32 s78, s%d, 384' % sHead)
    a('s_mul_i32 s74, s%d, 491520' % sW)
    a('s_add_u32 s78, s78, s74')
    a('s_lshl_b32 s79, s%d, 1' % sC0)
    a('s_waitcnt lgkmcnt(0)')
    a('s_load_dword s%d, s[24:25], 0' % sT)
    mk_srd(sX, 4, 1280)
    mk_srd(sW1, 16, 640 * 1536 * 2)
    mk_srd(sWq, 10, 640 * 6144 * 2)
    mk_srd(sK, 6, 402653184)
    a.vmem('buffer_load_dwordx4 v[124:127], v9, %s, 0 offen' % srd(sX), 'x0')
    a.vmem('buffer_load_dword v51, v9, %s, 0 offen offset:16' % srd(sX), 'x1')
    a.vmem('buffer_load_dwordx3 v[48:50], v10, %s, s79 offen' % srd(sW1), 'w1')
    WQ = 64
    for g in range(10):
        b = WQ + 6 * g
        a.vmem('buffer_load_dwordx4 v[%d:%d], v62, %s, s78 offen' % (b, b + 3, srd(sWq)), 'wqa%d' % g)
        a.vmem('buffer_load_dwordx2 v[%d:%d], v63, %s, s78 offen' % (b + 4, b + 5, srd(sWq)), 'wq%d' % g)
        if g < 9:
            a('s_add_u32 s78, s78, 12288')

    def kreg(g):
        return 24 + 6 * g if g < 4 else 64 + 6 * (g - 4)

    def vreg(g):
        return 88 + 6 * g if g < 6 else 48 + 6 * (g - 6)

    def kv_load(reg, g, s, nm):
        so = 75 + g // 3
        off = (g % 3) * 1536
        a.vmem('buffer_load_dwordx4 v[%d:%d], v4, %s, s%d offen offset:%d%s' % (reg, reg + 3, srd(s), so, off, KVM), nm + 'a')
        a.vmem('buffer_load_dwordx2 v[%d:%d], v5, %s, s%d offen offset:%d%s' % (reg + 4, reg + 5, srd(s), so, off, KVM), nm)

    for g in range(4):
        kv_load(kreg(g), g, sK, 'k%d' % g)
    mk_srd(sV, 8, 402653184)
    mk_srd(sWo, 12, 6144 * 640 * 2)
    mk_srd(sW2, 18, 1536 * 640 * 2)
    mk_srd(sOut, 20, 1280)
    mk_srd(sWs, 24, WS_BYTES)

    a('s_mov_b32 s80, %s' % f32(640.0))
    a('s_mov_b32 s81, %s' % f32(1.0 / 640.0))
    a.wait_vm('x1')
    E = 6
    xs = [124, 125, 126, 127, 51]
    for k in range(5):
        a('v_lshlrev_b32 v%d, 16, v%d' % (E + 2 * k, xs[k]))
        a('v_and_b32 v%d, 0xffff0000, v%d' % (E + 2 * k + 1, xs[k]))
    a('v_add_f32 v16, v%d, v%d' % (E, E + 1))
    for k in range(2, 10):
        a('v_add_f32 v16, v16, v%d' % (E + k))
    allred64([16], [17])

    def div640(r, t):
        a('v_mul_f32 v%d, s81, v%d' % (t, r))
        a('v_fma_f32 v%d, -v%d, s80, v%d' % (r, t, r))
        a('v_fma_f32 v%d, v%d, s81, v%d' % (r, r, t))

    div640(16, 17)
    a('v_sub_f32 v17, v%d, v16' % E)
    a('v_mul_f32 v18, v17, v17')
    for k in range(1, 10):
        a('v_sub_f32 v17, v%d, v16' % (E + k))
        a('v_fmac_f32 v18, v17, v17')
    allred64([18], [17])
    div640(18, 17)
    round_bf16_pair(16, 18, 17)
    a('v_add_f32 v18, %s, v18' % f32(1e-5))
    round_bf16_pair(18, 19, 17)
    a('v_sqrt_f32 v18, v18')
    round_bf16_pair(18, 19, 17)
    a('v_rcp_f32 v19, v18')
    a('v_mul_u32_u24 v20, 40, v1')
    for k in range(5):
        r0, r1 = E + 2 * k, E + 2 * k + 1
        a('v_sub_f32 v%d, v%d, v16' % (r0, r0))
        a('v_sub_f32 v%d, v%d, v16' % (r1, r1))
        round_bf16_pair(r0, r1, 17)
        for r in (r0, r1):
            a('v_mul_f32 v21, v%d, v19' % r)
            a('v_fma_f32 v22, -v21, v18, v%d' % r)
            a('v_fma_f32 v%d, v22, v19, v21' % r)
        round_bf16_pair(r0, r1, 17)
        a('ds_write_b64 v20, v[%d:%d] offset:%d' % (r0, r1, XN + 8 * k))
    a('v_min_u32 v21, 639, v0')
    a('v_lshlrev_b32 v21, 2, v21')
    a('s_mul_i32 s74, s%d, 160' % sW)
    a('v_mul_u32_u24 v22, 40, v3')
    a('v_add_u32 v22, s74, v22')
    a('s_waitcnt lgkmcnt(0)')
    a('s_add_u32 s%d, s%d, 1' % (sT, sT))
    a('s_not_b32 s%d, s%d' % (sNT, sT))
    a('ds_read_b32 v20, v21 offset:%d' % XN)
    MU = 52
    for b in range(5):
        a('ds_read_b64 v[%d:%d], v22 offset:%d' % (MU + 2 * b, MU + 2 * b + 1, XN + 8 * b))
    a.wait_vm('w1')
    a('s_waitcnt lgkmcnt(0)')
    macn(6, 20, 48, 3, 21, 22, first=True)
    allred64([6, 7, 8, 9, 10, 11], [12, 13, 14, 15, 16, 17])
    a('s_lshl_b32 s74, s%d, 5' % sW)
    a('v_mov_b32 v21, s74')
    for k in range(3):
        a('ds_write_b64 v21, v[%d:%d] offset:%d' % (6 + 2 * k, 7 + 2 * k, HP + 8 * k))
    for g in range(10):
        a.wait_vm('wq%d' % g)
        macn(ACC, MU + g, WQ + 6 * g, 6, 124, 125, first=(g == 0))
    a('v_mov_b32 v124, 0')
    a('v_mov_b32 v125, s%d' % sNT)
    a('v_lshlrev_b32 v126, 3, v0')
    a('v_mov_b32 v20, 0x%x' % OOB)
    a('s_lshl_b32 s82, s%d, 3' % sHead)
    a('s_add_u32 s82, s82, s%d' % sSplit)
    a('s_lshl_b32 s82, s82, 11')
    a('s_add_u32 s82, s82, %d' % P_OFF)
    a('s_lshl_b32 s83, s%d, 4' % sJ)
    a('s_add_u32 s83, s83, s%d' % sI)
    a('s_lshl_b32 s83, s83, 11')
    a('s_add_u32 s83, s83, %d' % Y_OFF)
    a('s_lshl_b32 s84, s%d, 3' % sC0)
    a('s_add_u32 s84, s84, %d' % H_OFF)
    for n, so in ((194, 82), (240, 83)):
        a('v_cmp_gt_u32 vcc, %d, v0' % n)
        a('v_cndmask_b32 v127, v20, v126, vcc')
        a.vmem('buffer_store_dwordx2 v[124:125], v127, %s, s%d offen %s' % (srd(sWs), so, stmod), 'clr')
    for g in range(4, 8):
        kv_load(kreg(g), g, sK, 'k%d' % g)
    for g in range(6):
        kv_load(vreg(g), g, sV, 'v%d' % g)
    acc_reduce_write(18, 19)
    a('s_waitcnt lgkmcnt(0)')
    a('s_barrier')
    a('s_cmp_gt_u32 s%d, 3' % sW)
    a('s_cbranch_scc1 L_q_done')
    a('s_cmp_eq_u32 s%d, 3' % sW)
    a('s_cbranch_scc1 L_h_red')
    a('v_lshlrev_b32 v22, 2, v0')
    for k in range(16):
        a('ds_read_b32 v%d, v22 offset:%d' % (6 + k, QP + 768 * k))
    a('s_waitcnt lgkmcnt(0)')
    for step in (8, 4, 2, 1):
        for k in range(step):
            a('v_add_f32 v%d, v%d, v%d' % (6 + k, 6 + k, 6 + k + step))
    a('v_cvt_pk_bf16_f32 v6, v6, v6')
    a('v_lshlrev_b32 v22, 1, v0')
    a('ds_write_b16 v22, v6 offset:%d' % QL)
    a('s_branch L_q_done')
    a.label('L_h_red')
    a('v_min_u32 v22, 5, v1')
    a('v_lshlrev_b32 v22, 2, v22')
    for k in range(16):
        a('ds_read_b32 v%d, v22 offset:%d' % (6 + k, HP + 32 * k))
    a('s_waitcnt lgkmcnt(0)')
    for step in (8, 4, 2, 1):
        for k in range(step):
            a('v_add_f32 v%d, v%d, v%d' % (6 + k, 6 + k, 6 + k + step))
    round_bf16_pair(6, 7, 8)
    a('v_max_f32 v6, 0, v6')
    a('v_mov_b32 v7, s%d' % sT)
    a('v_lshlrev_b32 v22, 1, v22')
    a('buffer_store_dwordx2 v[6:7], v22, %s, s84 offen %s' % (srd(sWs), stmod))
    a.label('L_q_done')
    a('s_waitcnt lgkmcnt(0)')
    a('s_barrier')
    for g in range(6, 8):
        kv_load(vreg(g), g, sV, 'v%d' % g)
    a('s_mul_i32 s86, s%d, 80' % sJ)
    a('s_lshl_b32 s74, s%d, 4' % sCg)
    a('s_add_u32 s86, s86, s74')
    a('v_and_b32 v124, 31, v1')
    a('v_mul_u32_u24 v124, 1280, v124')
    a('s_mul_i32 s88, s%d, 96' % sI)
    a('s_lshl_b32 s74, s%d, 5' % sThird)
    a('s_add_u32 s88, s88, s74')
    a('s_mul_i32 s89, s88, 1280')
    a('s_add_u32 s89, s89, s86')
    a.vmem('buffer_load_dwordx4 v[60:63], v124, %s, s89 offen' % srd(sW2), 'w2')
    QF = 18
    a('v_lshlrev_b32 v124, 4, v2')
    a('v_lshlrev_b32 v125, 3, v2')
    a('ds_read_b128 v[%d:%d], v124 offset:%d' % (QF, QF + 3, QL))
    a('ds_read_b64 v[%d:%d], v125 offset:%d' % (QF + 4, QF + 5, QL + 256))
    a('s_mov_b32 s80, %s' % f32(192 ** -0.5))
    a('s_mov_b32 s81, %s' % f32(1.4426950408889634))
    a('s_waitcnt lgkmcnt(0)')
    S = [kreg(g) for g in range(8)]
    for gg in range(2):
        gs = list(range(4 * gg, 4 * gg + 4))
        a.wait_vm('k%d' % gs[-1])
        for d in range(6):
            for g in gs:
                k = kreg(g)
                if d == 0:
                    a('v_dot2_f32_bf16 v%d, v%d, v%d, 0' % (k, k, QF))
                else:
                    a('v_dot2_f32_bf16 v%d, v%d, v%d, v%d' % (k, k + d, QF + d, k))
        red_dpp([kreg(g) for g in gs], 'add', [Q1, Q2, HM, RM])
        for p in range(2):
            r0, r1 = kreg(gs[2 * p]), kreg(gs[2 * p + 1])
            round_bf16_pair(r0, r1, r0 + 1)
            a('v_mul_f32 v%d, s80, v%d' % (r0, r0))
            a('v_mul_f32 v%d, s80, v%d' % (r1, r1))
            round_bf16_pair(r0, r1, r0 + 1)
    a('v_mul_u32_u24 v124, 1280, v1')
    a('s_mul_i32 s85, s%d, 384' % sI)
    a('s_lshl_b32 s74, s%d, 7' % sThird)
    a('s_add_u32 s85, s85, s74')
    a('s_mul_i32 s85, s85, 1280')
    a('s_add_u32 s85, s85, s86')
    a('s_add_u32 s87, s85, 81920')
    WO0, WO1 = 26, 32
    a.vmem('buffer_load_dwordx4 v[%d:%d], v124, %s, s85 offen' % (WO0, WO0 + 3, srd(sWo)), 'wo0')
    a.vmem('buffer_load_dwordx4 v[%d:%d], v124, %s, s87 offen' % (WO1, WO1 + 3, srd(sWo)), 'wo1')
    a('v_max_f32 v124, v%d, v%d' % (S[0], S[1]))
    for g in range(2, 8):
        a('v_max_f32 v124, v124, v%d' % S[g])
    red_swap([124], [125], 'max', 16)
    red_swap([124], [125], 'max', 32)
    a('s_lshl_b32 s74, s%d, 2' % sW)
    a('v_mov_b32 v126, s74')
    a('ds_write_b32 v126, v124 offset:%d' % MX)
    a('s_waitcnt lgkmcnt(0)')
    a('s_barrier')
    a('v_mov_b32 v125, 0')
    for b in range(4):
        a('ds_read_b128 v[%d:%d], v125 offset:%d' % (6 + 4 * b, 9 + 4 * b, MX + 16 * b))
    a('s_waitcnt lgkmcnt(0)')
    a('v_max_f32 v124, v6, v7')
    for b in range(1, 8):
        a('v_max3_f32 v124, v124, v%d, v%d' % (6 + 2 * b, 7 + 2 * b))
    for g in range(8):
        a('v_sub_f32 v%d, v%d, v124' % (S[g], S[g]))
    for g in range(8):
        a('v_mul_f32 v%d, s81, v%d' % (S[g], S[g]))
    for g in range(8):
        a('v_exp_f32 v%d, v%d' % (S[g], S[g]))
    a('v_add_f32 v125, v%d, v%d' % (S[0], S[1]))
    for g in range(2, 8):
        a('v_add_f32 v125, v125, v%d' % S[g])
    red_swap([125], [127], 'add', 16)
    red_swap([125], [127], 'add', 32)
    a('ds_write_b32 v126, v125 offset:%d' % LS)
    for g in range(8):
        a.wait_vm('v%d' % g)
        macn(ACC, S[g], vreg(g), 6, 126, 127, first=(g == 0))
    acc_reduce_write(18, 19)
    a('s_waitcnt lgkmcnt(0)')
    a('s_barrier')
    a('s_cmp_gt_u32 s%d, 3' % sW)
    a('s_cbranch_scc1 L_pub_done')
    a('s_cmp_eq_u32 s%d, 3' % sW)
    a('s_cbranch_scc1 L_pub_stats')
    a('v_lshlrev_b32 v64, 2, v0')
    for k in range(16):
        a('ds_read_b32 v%d, v64 offset:%d' % (68 + k, QP + 768 * k))
    a('s_waitcnt lgkmcnt(0)')
    for step in (8, 4, 2, 1):
        for k in range(step):
            a('v_add_f32 v%d, v%d, v%d' % (68 + k, 68 + k, 68 + k + step))
    a('v_mov_b32 v69, s%d' % sT)
    a('v_lshlrev_b32 v64, 3, v0')
    a('buffer_store_dwordx2 v[68:69], v64, %s, s82 offen %s' % (srd(sWs), stmod))
    a('s_branch L_pub_done')
    a.label('L_pub_stats')
    a('v_mov_b32 v64, 0')
    for b in range(4):
        a('ds_read_b128 v[%d:%d], v64 offset:%d' % (68 + 4 * b, 71 + 4 * b, LS + 16 * b))
    a('s_waitcnt lgkmcnt(0)')
    for step in (8, 4, 2, 1):
        for k in range(step):
            a('v_add_f32 v%d, v%d, v%d' % (68 + k, 68 + k, 68 + k + step))
    a('v_mov_b32 v84, v124')
    a('v_mov_b32 v85, s%d' % sT)
    a('v_mov_b32 v86, v68')
    a('v_mov_b32 v87, s%d' % sT)
    a('v_mov_b32 v65, 0x%x' % OOB)
    a('v_cmp_eq_u32 vcc, 0, v1')
    a('v_cndmask_b32 v64, v65, v64, vcc')
    a('buffer_store_dwordx2 v[84:85], v64, %s, s82 offen offset:1536 %s' % (srd(sWs), stmod))
    a('buffer_store_dwordx2 v[86:87], v64, %s, s82 offen offset:1544 %s' % (srd(sWs), stmod))
    a.label('L_pub_done')
    a.wait_vm_all()

    def poll_tail(lbl, cnt, ok):
        a.nop(5)
        a('s_cmp_eq_u64 s[%d:%d], exec' % (ok, ok + 1))
        a('s_cbranch_scc1 %s_ok' % lbl)
        a('s_sub_u32 s%d, s%d, 1' % (cnt, cnt))
        a('s_cbranch_scc1 %s_ok' % lbl)
        a('s_sleep 1')
        a('s_branch %s' % lbl)
        a.label('%s_ok' % lbl)

    def tags_ok(tagregs, t0, t1, ok):
        a('v_xor_b32 v%d, s%d, v%d' % (t0, sT, tagregs[0]))
        for r in tagregs[1:]:
            a('v_xor_b32 v%d, s%d, v%d' % (t1, sT, r))
            a('v_or_b32 v%d, v%d, v%d' % (t0, t0, t1))
        a('v_cmp_eq_u32 s[%d:%d], 0, v%d' % (ok, ok + 1, t0))

    def y_reduce_publish(acc, byte_off):
        regs = [acc + 2 * k for k in range(8)]
        allred64(regs, [acc + 2 * k + 1 for k in range(8)])
        for k in range(8):
            a('v_mov_b32 v%d, s%d' % (acc + 2 * k + 1, sT))
        a('v_mov_b32 v66, 0')
        a('v_mov_b32 v65, 0x%x' % OOB)
        a('v_cmp_eq_u32 vcc, 0, v1')
        a('v_cndmask_b32 v66, v65, v66, vcc')
        for k in range(8):
            a('buffer_store_dwordx2 v[%d:%d], v66, %s, s90 offen offset:%d %s' % (acc + 2 * k, acc + 2 * k + 1, srd(sWs), byte_off + 8 * k, stmod))

    a('s_mul_i32 s90, s%d, 320' % sThird)
    a('s_lshl_b32 s74, s%d, 6' % sCg)
    a('s_add_u32 s90, s90, s74')
    a('s_add_u32 s90, s90, s83')
    a('s_cmp_eq_u32 s%d, 15' % sW)
    a('s_cbranch_scc1 L_b_done')
    a('v_and_b32 v64, 31, v1')
    a('v_lshlrev_b32 v64, 3, v64')
    a('s_lshl_b32 s91, s88, 3')
    a('s_add_u32 s91, s91, %d' % H_OFF)
    a('s_mov_b32 s92, %d' % SPIN)
    a.label('L_hpoll')
    a('buffer_load_dwordx2 v[68:69], v64, %s, s91 offen %s' % (srd(sWs), ldmod))
    a('s_waitcnt vmcnt(0)')
    a('v_cmp_eq_u32 s[94:95], s%d, v69' % sT)
    poll_tail('L_hpoll', 92, 94)
    a('v_cmp_gt_u32 vcc, 32, v1')
    a('v_cndmask_b32 v68, 0, v68, vcc')
    macn(72, 68, 60, 4, 70, 71, first=True, astride=2)
    y_reduce_publish(72, 960)
    a.label('L_b_done')
    a('s_barrier')
    a('s_lshr_b32 s74, s%d, 3' % sW)
    a('s_lshl_b32 s91, s%d, 1' % sI)
    a('s_add_u32 s91, s91, s74')
    a('s_lshl_b32 s91, s91, 14')
    a('s_add_u32 s91, s91, %d' % P_OFF)
    a('s_and_b32 s93, s%d, 7' % sW)
    a('s_mul_i32 s93, s93, 24')
    a('v_and_b32 v64, 7, v1')
    a('v_lshlrev_b32 v64, 11, v64')
    a('v_lshrrev_b32 v65, 3, v1')
    a('v_add_u32 v65, s93, v65')
    a('v_lshlrev_b32 v66, 3, v65')
    a('v_add_u32 v66, v64, v66')
    a('s_mov_b32 s92, %d' % SPIN)
    a.label('L_gpoll')
    for k in range(3):
        a('buffer_load_dwordx2 v[%d:%d], v66, %s, s91 offen offset:%d %s' % (68 + 2 * k, 69 + 2 * k, srd(sWs), 64 * k, ldmod))
    a('buffer_load_dwordx4 v[76:79], v64, %s, s91 offen offset:1536 %s' % (srd(sWs), ldmod))
    a('s_waitcnt vmcnt(0)')
    tags_ok([69, 71, 73, 77, 79], 80, 81, 94)
    poll_tail('L_gpoll', 92, 94)
    a('v_mov_b32 v80, v76')
    red_dpp([80], 'max', [Q1, Q2, HM])
    a('v_sub_f32 v80, v76, v80')
    a('v_mul_f32 v80, s81, v80')
    a('v_exp_f32 v80, v80')
    a('v_mul_f32 v78, v78, v80')
    for k in range(3):
        a('v_mul_f32 v%d, v%d, v80' % (68 + 2 * k, 68 + 2 * k))
    red_dpp([78, 68, 70, 72], 'add', [Q1, Q2, HM])
    a('v_rcp_f32 v81, v78')
    for k in range(3):
        r = 68 + 2 * k
        a('v_mul_f32 v%d, v%d, v81' % (r + 1, r))
        a('v_fma_f32 v%d, -v%d, v78, v%d' % (r, r + 1, r))
        a('v_fma_f32 v%d, v%d, v81, v%d' % (r, r, r + 1))
    round_bf16_pair(68, 70, 69)
    round_bf16_pair(72, 73, 69)
    a('s_lshr_b32 s74, s%d, 3' % sW)
    a('s_mul_i32 s74, s74, 192')
    a('v_add_u32 v65, s74, v65')
    a('v_lshlrev_b32 v65, 2, v65')
    for k in range(3):
        a('ds_write_b32 v65, v%d offset:%d' % (68 + 2 * k, OL + 32 * k))
    a('s_waitcnt lgkmcnt(0)')
    a('s_barrier')
    a('s_cmp_eq_u32 s%d, 15' % sW)
    a('s_cbranch_scc1 L_y_done')
    a('s_lshl_b32 s74, s%d, 9' % sThird)
    a('v_lshlrev_b32 v64, 2, v1')
    a('v_add_u32 v64, s74, v64')
    a('ds_read_b32 v68, v64 offset:%d' % OL)
    a('ds_read_b32 v69, v64 offset:%d' % (OL + 256))
    a('s_waitcnt lgkmcnt(0)')
    macn(72, 68, WO0, 4, 70, 71, first=True, astride=2)
    macn(72, 69, WO1, 4, 70, 71, first=False, astride=2)
    y_reduce_publish(72, 0)
    a.label('L_y_done')
    a('s_cmp_lg_u32 s%d, s%d' % (sI, sJ))
    a('s_cbranch_scc1 L_end')
    a('s_waitcnt vmcnt(0)')
    a('s_barrier')
    a('s_cmp_gt_u32 s%d, 9' % sW)
    a('s_cbranch_scc1 L_end')
    a('s_lshl_b32 s91, s%d, 15' % sJ)
    a('s_add_u32 s91, s91, %d' % Y_OFF)
    a('v_and_b32 v64, 15, v1')
    a('v_lshlrev_b32 v64, 11, v64')
    a('v_lshrrev_b32 v65, 4, v1')
    a('s_lshl_b32 s74, s%d, 2' % sW)
    a('v_add_u32 v65, s74, v65')
    a('v_lshlrev_b32 v66, 3, v65')
    a('v_add_u32 v64, v64, v66')
    a('s_mul_i32 s93, s%d, 80' % sJ)
    a('v_lshlrev_b32 v67, 1, v65')
    a('buffer_load_ushort v90, v67, %s, s93 offen' % srd(sX))
    a('s_mov_b32 s92, %d' % SPIN)
    a.label('L_fpoll')
    for k in range(6):
        a('buffer_load_dwordx2 v[%d:%d], v64, %s, s91 offen offset:%d %s' % (68 + 2 * k, 69 + 2 * k, srd(sWs), 320 * k, ldmod))
    a('s_waitcnt vmcnt(0)')
    tags_ok([69, 71, 73, 75, 77, 79], 80, 81, 94)
    poll_tail('L_fpoll', 92, 94)
    a('v_add_f32 v68, v68, v70')
    a('v_add_f32 v74, v74, v76')
    a('v_add_f32 v68, v68, v72')
    a('v_add_f32 v74, v74, v78')
    red_dpp([68, 74], 'add', [Q1, Q2, HM, RM])
    round_bf16_pair(68, 74, 69)
    a('v_lshlrev_b32 v90, 16, v90')
    a('v_add_f32 v68, v90, v68')
    round_bf16_pair(68, 70, 69)
    a('v_add_f32 v68, v68, v74')
    a('v_cvt_pk_bf16_f32 v68, v68, v68')
    a('v_and_b32 v69, 15, v1')
    a('v_mov_b32 v70, 0x%x' % OOB)
    a('v_cmp_eq_u32 vcc, 0, v69')
    a('v_cndmask_b32 v67, v70, v67, vcc')
    a('buffer_store_short v68, v67, %s, s93 offen' % srd(sOut))
    a('s_or_b32 s74, s%d, s%d' % (sJ, sW))
    a('s_cmp_lg_u32 s74, 0')
    a('s_cbranch_scc1 L_end')
    a('v_mov_b32 v71, s%d' % sT)
    a('v_mov_b32 v72, 0')
    a('v_cmp_eq_u32 vcc, 0, v1')
    a('v_cndmask_b32 v72, v70, v72, vcc')
    a('buffer_store_dword v71, v72, %s, 0 offen' % srd(sWs))
    a.raw('L_end:')
    a.raw('    s_endpgm')
    return a


def full(a):
    hdr = """; fused decode kernel: layernorm + q-proj + sliding-window attention + out-proj + relu FFN
; generated by gen/gen1.py
; @launch grid=(256,1,1) block=(1024,1,1) lds=%d
.amdgcn_target "amdgcn-amd-amdhsa--gfx950"
.text
.globl %s_kernel
.p2align 8
.type %s_kernel,@function
%s_kernel:
""" % (LDS_BYTES, NAME, NAME, NAME)
    ftr = """.section .rodata,"a"
.p2align 6
.amdhsa_kernel %s_kernel
  .amdhsa_next_free_vgpr 128
  .amdhsa_next_free_sgpr 96
  .amdhsa_accum_offset 128
  .amdhsa_group_segment_fixed_size 0
  .amdhsa_kernarg_size 88
  .amdhsa_user_sgpr_count 2
  .amdhsa_user_sgpr_kernarg_segment_ptr 1
  .amdhsa_system_sgpr_workgroup_id_x 1
.end_amdhsa_kernel
""" % NAME
    return hdr + a.text() + ftr


if __name__ == '__main__':
    out = sys.argv[1] if len(sys.argv) > 1 else 'cdna_kernels/%s.s' % NAME
    open(out, 'w').write(full(build()))
```
